```python
import torch

def _softmax(x, axis=-1):
    return torch.softmax(x, dim=axis)

def _gelu(x):
    return torch.nn.functional.gelu(x, approximate='tanh')

def _silu(x):
    return torch.nn.functional.silu(x)

def _sigmoid(x):
    return torch.sigmoid(x)

def _layernorm(x, axis=-1, eps=1e-05):
    m = x.mean(dim=axis, keepdim=True)
    v = x.var(dim=axis, keepdim=True, unbiased=False)
    return (x - m) / torch.sqrt(v + eps)

def _scatter_add(tgt, idx, src, axis=0):
    return tgt.clone().index_add_(axis, idx, src)

def _segment_sum(src, seg, n):
    out = torch.zeros((n,) + src.shape[1:], dtype=src.dtype)
    return out.index_add_(0, seg, src)

def _pad(x, pw):
    flat = tuple((v for pair in reversed(pw) for v in pair))
    return torch.nn.functional.pad(x, flat)
kernel_name = 'adaLN_cond__mha_block__moe_arch_mod__prompt'

def setup_inputs():

    _w = lambda a: (lambda t: t.to(torch.bfloat16) if t.is_floating_point() else t)(torch.as_tensor(a))

    def _A_setup():
        B, S, D, H = (1, 2048, 1024, 32)
        return {'x': _w((lambda *s: torch.randn(*s, dtype=torch.bfloat16) * 0.05)(B, S, D)), 'wqkv': _w((lambda *s: torch.randn(*s, dtype=torch.bfloat16) * 0.05)(D, 3 * D)), 'wo': _w((lambda *s: torch.randn(*s, dtype=torch.bfloat16) * 0.05)(D, D))}
    _A_in = _A_setup()

    def _B_setup():
        B, S, D, F, C = (1, 2048, 1024, 3584, 1)
        return {'x': _w((lambda *s: torch.randn(*s, dtype=torch.bfloat16) * 0.05)(B, S, D)), 'w_r': _w((lambda *s: torch.randn(*s, dtype=torch.bfloat16) * 0.05)(D)), 'w_gate': _w((lambda *s: torch.randn(*s, dtype=torch.bfloat16) * 0.05)(D, F)), 'w_up': _w((lambda *s: torch.randn(*s, dtype=torch.bfloat16) * 0.05)(D, F)), 'w_down': _w((lambda *s: torch.randn(*s, dtype=torch.bfloat16) * 0.05)(F, D))}
    _B_in = _B_setup()
    return {'A_x': _A_in['x'], 'A_wqkv': _A_in['wqkv'], 'A_wo': _A_in['wo'], 'B_x': _B_in['x'], 'B_w_r': _B_in['w_r'], 'B_w_gate': _B_in['w_gate'], 'B_w_up': _B_in['w_up'], 'B_w_down': _B_in['w_down'], 'c': _w((lambda *s: torch.randn(*s, dtype=torch.bfloat16) * 0.1)(1, 1024) * 8.0), 'w_mod': _w((lambda *s: torch.randn(*s, dtype=torch.bfloat16) * 0.1)(1024, 6 * 1024) * 1024 ** (-0.5) * 8.0)}

def reference(A_x, A_wqkv, A_wo, B_x, B_w_r, B_w_gate, B_w_up, B_w_down, c, w_mod):

    def _A_ref(x, wqkv, wo):
        B, S, D = x.shape
        H = 32
        Dh = D // H
        qkv = (lambda x, *d: x.permute(*d))((x @ wqkv).reshape(B, S, 3, H, Dh), 2, 0, 3, 1, 4)
        q, k, v = (qkv[0], qkv[1], qkv[2])
        scores = torch.einsum('bhqd,bhkd->bhqk', q, k) * Dh ** (-0.5)
        p = _softmax(scores, axis=-1)
        o = torch.einsum('bhqk,bhkd->bhqd', p, v)
        return (lambda x, *d: x.permute(*d))(o, 0, 2, 1, 3).reshape(B, S, D) @ wo

    def _B_ref(x, w_r, w_gate, w_up, w_down):
        B, S, D = x.shape
        C = 1
        r = x @ w_r
        idx = torch.argsort(-r, axis=-1)[:, :C]
        idx_e = (lambda x, n, axis: torch.repeat_interleave(x, n, dim=axis))(idx.reshape(B, C, 1), D, axis=2)
        x_sel = (lambda x, i, axis: torch.take_along_dim(x, i, dim=axis))(x, idx_e, axis=1)
        g = _silu(x_sel @ w_gate)
        u = x_sel @ w_up
        y = g * u @ w_down
        r_sel = _sigmoid((lambda x, i, axis: torch.take_along_dim(x, i, dim=axis))(r, idx, axis=1))
        y = y * r_sel.reshape(B, C, 1)
        b_off = (torch.arange(B) * S).reshape(B, 1)
        flat_idx = (idx + b_off).reshape(B * C)
        zero = (x * 0.0).reshape(B * S, D)
        upd = _scatter_add(zero, flat_idx, y.reshape(B * C, D), axis=0)
        return x + upd.reshape(B, S, D)
    x = A_x
    mod = (_silu(c) @ w_mod).reshape(c.shape[0], 6, 1, -1)
    sa, ca, ga, sb, cb, gb = (mod[:, 0].clone(), mod[:, 1].clone(), mod[:, 2].clone(), mod[:, 3].clone(), mod[:, 4].clone(), mod[:, 5].clone())
    h = _layernorm(x, axis=-1) * (1 + ca) + sa
    x = x + ga * _A_ref(h, A_wqkv, A_wo)
    h = _layernorm(x, axis=-1) * (1 + cb) + sb
    x = x + gb * _B_ref(h, B_w_r, B_w_gate, B_w_up, B_w_down)
    return x
```

```python
S, D, H, DH, F = 2048, 1024, 32, 32, 3584

KA_X, KA_WQKV, KA_WO, KA_BX, KA_WR, KA_WG, KA_WU, KA_WD, KA_C, KA_WMOD, KA_OUT, KA_DBG, KA_WS = [8*i for i in range(13)]

WS_MOD   = 0x0
WS_ZERO  = 0x8000
WS_STAT  = 0x8000
WS_GU    = 0xE000
WS_Y     = 0x15000
WS_CNT   = 0x16000
WS_ZERO_END = 0x16100
WS_H     = 0x100000
WS_Q     = 0x500000
WS_K     = 0x900000
WS_V     = 0xD00000
WS_O     = 0x1100000
WS_X1    = 0x1500000
WS_SIZE  = 268435456

class Asm:
    def __init__(self):
        self.lines = []
        self.uid = 0
    def __call__(self, s):
        for l in s.split("\n"):
            l = l.strip()
            if l:
                self.lines.append("    " + l)
    def label(self, l):
        self.lines.append(l + ":")
    def comment(self, c):
        self.lines.append("    ; " + c)
    def newlabel(self, base):
        self.uid += 1
        return f"L_{base}_{self.uid}"
    def text(self):
        return "\n".join(self.lines) + "\n"

def kbegin(a, name):
    a.lines.append(f".globl {name}\n.p2align 8\n.type {name},@function\n{name}:")

def kdesc(name, vgpr, sgpr=102, accum=None):
    if accum is None:
        accum = (vgpr + 3) // 4 * 4
    return f""".p2align 6
.amdhsa_kernel {name}
  .amdhsa_next_free_vgpr {vgpr}
  .amdhsa_next_free_sgpr {sgpr}
  .amdhsa_accum_offset {accum}
  .amdhsa_group_segment_fixed_size 0
  .amdhsa_kernarg_size 104
  .amdhsa_user_sgpr_count 2
  .amdhsa_user_sgpr_kernarg_segment_ptr 1
  .amdhsa_system_sgpr_workgroup_id_x 1
.end_amdhsa_kernel
"""

def srd(a, dst, base, nbytes, off=0):
    if off:
        a(f"s_add_u32 s{dst}, s{base}, {hex(off)}")
        a(f"s_addc_u32 s{dst+1}, s{base+1}, 0")
    else:
        a(f"s_mov_b32 s{dst}, s{base}")
        a(f"s_mov_b32 s{dst+1}, s{base+1}")
    a(f"s_mov_b32 s{dst+2}, {hex(nbytes)}")
    a(f"s_mov_b32 s{dst+3}, 0x00020000")

def vr(lo, n):
    return f"v[{lo}:{lo+n-1}]" if n > 1 else f"v{lo}"
def ar(lo, n):
    return f"a[{lo}:{lo+n-1}]" if n > 1 else f"a{lo}"
def sr(lo, n):
    return f"s[{lo}:{lo+n-1}]" if n > 1 else f"s{lo}"

def wave_allreduce(a, v, t, op="add"):
    ins = {"add": "v_add_f32", "max": "v_max_f32"}[op]
    a("s_nop 1")
    a(f"{ins}_dpp v{v}, v{v}, v{v} quad_perm:[1,0,3,2] row_mask:0xf bank_mask:0xf")
    a("s_nop 1")
    a(f"{ins}_dpp v{v}, v{v}, v{v} quad_perm:[2,3,0,1] row_mask:0xf bank_mask:0xf")
    a("s_nop 1")
    a(f"{ins}_dpp v{v}, v{v}, v{v} row_half_mirror row_mask:0xf bank_mask:0xf")
    a("s_nop 1")
    a(f"{ins}_dpp v{v}, v{v}, v{v} row_mirror row_mask:0xf bank_mask:0xf")
    a(f"v_mov_b32 v{t}, v{v}")
    a("s_nop 1")
    a(f"v_permlane16_swap_b32 v{t}, v{v}")
    a("s_nop 0")
    a(f"{ins} v{v}, v{v}, v{t}")
    a(f"v_mov_b32 v{t}, v{v}")
    a("s_nop 1")
    a(f"v_permlane32_swap_b32 v{t}, v{v}")
    a("s_nop 0")
    a(f"{ins} v{v}, v{v}, v{t}")

def wave_allreduce2(a, v1, v2, t1, t2, op="add"):
    ins = {"add": "v_add_f32", "max": "v_max_f32"}[op]
    a("s_nop 1")
    for m in ("quad_perm:[1,0,3,2]", "quad_perm:[2,3,0,1]", "row_half_mirror", "row_mirror"):
        a("s_nop 0")
        a(f"{ins}_dpp v{v1}, v{v1}, v{v1} {m} row_mask:0xf bank_mask:0xf")
        a(f"{ins}_dpp v{v2}, v{v2}, v{v2} {m} row_mask:0xf bank_mask:0xf")
    for p in ("v_permlane16_swap_b32", "v_permlane32_swap_b32"):
        a(f"v_mov_b32 v{t1}, v{v1}")
        a(f"v_mov_b32 v{t2}, v{v2}")
        a("s_nop 1")
        a(f"{p} v{t1}, v{v1}")
        a(f"{p} v{t2}, v{v2}")
        a("s_nop 0")
        a(f"{ins} v{v1}, v{v1}, v{t1}")
        a(f"{ins} v{v2}, v{v2}, v{t2}")

LOG2E = 1.4426950408889634
import struct
def f32hex(x):
    return hex(struct.unpack("<I", struct.pack("<f", x))[0])
```

```python
import sys, importlib
sys.path.insert(0, "gen")
from common import *
HEADER = open("adaLN_cond__mha_block__moe_arch_mod__prompt.s.ref").read().split("; Override launch geometry")[0]

def build(mods, out):
    a = Asm()
    descs = []
    launches = []
    seen = set()
    for mname in mods:
        m = importlib.import_module(mname)
        blk = getattr(m, "BLOCK", 256)
        launches.append(f"; @launch kernel={m.NAME} grid=({m.GRID},1,1) block=({blk},1,1) lds={m.LDS}")
        if m.NAME in seen:
            continue
        seen.add(m.NAME)
        descs.append(m.gen(a))
    txt = HEADER.rstrip("\n") + "\n" + "\n".join(launches) + "\n"
    txt += '.amdgcn_target "amdgcn-amd-amdhsa--gfx950"\n.text\n'
    txt += a.text()
    txt += '.section .rodata,"a"\n' + "".join(descs)
    open(out, "w").write(txt)
    print("wrote", out, len(txt), "bytes")

if __name__ == "__main__":
    mods = sys.argv[2:] if len(sys.argv) > 2 else ["ka", "k1", "kb", "kc", "kd", "kf", "kg"]
    out = sys.argv[1] if len(sys.argv) > 1 else "adaLN_cond__mha_block__moe_arch_mod__prompt.s"
    build(mods, out)
```

```python
S, D, H, DH, F = 2048, 1024, 32, 32, 3584

KA_X, KA_WQKV, KA_WO, KA_BX, KA_WR, KA_WG, KA_WU, KA_WD, KA_C, KA_WMOD, KA_OUT, KA_DBG, KA_WS = [8*i for i in range(13)]

WS_MOD   = 0x0
WS_ZERO  = 0x8000
WS_STAT  = 0x8000
WS_GU    = 0xE000
WS_Y     = 0x15000
WS_CNT   = 0x16000
WS_ZERO_END = 0x16100
WS_H     = 0x100000
WS_Q     = 0x500000
WS_K     = 0x900000
WS_V     = 0xD00000
WS_O     = 0x1100000
WS_X1    = 0x1500000
WS_SIZE  = 268435456

class Asm:
    def __init__(self):
        self.lines = []
        self.uid = 0
    def __call__(self, s):
        for l in s.split("\n"):
            l = l.strip()
            if l:
                self.lines.append("    " + l)
    def label(self, l):
        self.lines.append(l + ":")
    def comment(self, c):
        self.lines.append("    ; " + c)
    def newlabel(self, base):
        self.uid += 1
        return f"L_{base}_{self.uid}"
    def text(self):
        return "\n".join(self.lines) + "\n"

def kbegin(a, name):
    a.lines.append(f".globl {name}\n.p2align 8\n.type {name},@function\n{name}:")

def kdesc(name, vgpr, sgpr=102, accum=None):
    import os
    if os.environ.get('STAMPS', '0') in ('1', '2'):
        vgpr = 256
    if accum is None:
        accum = (vgpr + 3) // 4 * 4
    return f""".p2align 6
.amdhsa_kernel {name}
  .amdhsa_next_free_vgpr {vgpr}
  .amdhsa_next_free_sgpr {sgpr}
  .amdhsa_accum_offset {accum}
  .amdhsa_group_segment_fixed_size 0
  .amdhsa_kernarg_size 104
  .amdhsa_user_sgpr_count 2
  .amdhsa_user_sgpr_kernarg_segment_ptr 1
  .amdhsa_system_sgpr_workgroup_id_x 1
.end_amdhsa_kernel
"""

def srd(a, dst, base, nbytes, off=0):
    if off:
        a(f"s_add_u32 s{dst}, s{base}, {hex(off)}")
        a(f"s_addc_u32 s{dst+1}, s{base+1}, 0")
    else:
        a(f"s_mov_b32 s{dst}, s{base}")
        a(f"s_mov_b32 s{dst+1}, s{base+1}")
    a(f"s_mov_b32 s{dst+2}, {hex(nbytes)}")
    a(f"s_mov_b32 s{dst+3}, 0x00020000")

def vr(lo, n):
    return f"v[{lo}:{lo+n-1}]" if n > 1 else f"v{lo}"
def ar(lo, n):
    return f"a[{lo}:{lo+n-1}]" if n > 1 else f"a{lo}"
def sr(lo, n):
    return f"s[{lo}:{lo+n-1}]" if n > 1 else f"s{lo}"

def wave_allreduce(a, v, t, op="add"):
    ins = {"add": "v_add_f32", "max": "v_max_f32"}[op]
    a("s_nop 1")
    a(f"{ins}_dpp v{v}, v{v}, v{v} quad_perm:[1,0,3,2] row_mask:0xf bank_mask:0xf")
    a("s_nop 1")
    a(f"{ins}_dpp v{v}, v{v}, v{v} quad_perm:[2,3,0,1] row_mask:0xf bank_mask:0xf")
    a("s_nop 1")
    a(f"{ins}_dpp v{v}, v{v}, v{v} row_half_mirror row_mask:0xf bank_mask:0xf")
    a("s_nop 1")
    a(f"{ins}_dpp v{v}, v{v}, v{v} row_mirror row_mask:0xf bank_mask:0xf")
    a(f"v_mov_b32 v{t}, v{v}")
    a("s_nop 1")
    a(f"v_permlane16_swap_b32 v{t}, v{v}")
    a("s_nop 0")
    a(f"{ins} v{v}, v{v}, v{t}")
    a(f"v_mov_b32 v{t}, v{v}")
    a("s_nop 1")
    a(f"v_permlane32_swap_b32 v{t}, v{v}")
    a("s_nop 0")
    a(f"{ins} v{v}, v{v}, v{t}")

def wave_allreduce2(a, v1, v2, t1, t2, op="add"):
    ins = {"add": "v_add_f32", "max": "v_max_f32"}[op]
    a("s_nop 1")
    for m in ("quad_perm:[1,0,3,2]", "quad_perm:[2,3,0,1]", "row_half_mirror", "row_mirror"):
        a("s_nop 0")
        a(f"{ins}_dpp v{v1}, v{v1}, v{v1} {m} row_mask:0xf bank_mask:0xf")
        a(f"{ins}_dpp v{v2}, v{v2}, v{v2} {m} row_mask:0xf bank_mask:0xf")
    for p in ("v_permlane16_swap_b32", "v_permlane32_swap_b32"):
        a(f"v_mov_b32 v{t1}, v{v1}")
        a(f"v_mov_b32 v{t2}, v{v2}")
        a("s_nop 1")
        a(f"{p} v{t1}, v{v1}")
        a(f"{p} v{t2}, v{v2}")
        a("s_nop 0")
        a(f"{ins} v{v1}, v{v1}, v{t1}")
        a(f"{ins} v{v2}, v{v2}, v{t2}")

LOG2E = 1.4426950408889634
import struct
def f32hex(x):
    return hex(struct.unpack("<I", struct.pack("<f", x))[0])

import os
STAMPS = os.environ.get("STAMPS", "0") in ("1", "2")
STAMP_INS = "s_memtime" if os.environ.get("STAMPS", "0") == "2" else "s_memrealtime"
WS_DBG = 0x1A00000
def stamp(a, i):
    if STAMPS:
        a(f"{STAMP_INS} s[{80+2*i}:{81+2*i}]")
def stamp_flush(a, n, kid, wsreg=8):
    if not STAMPS:
        return
    a("s_mov_b64 exec, -1")
    a(f"{STAMP_INS} s[{80+2*n}:{81+2*n}]")
    srd(a, 96, wsreg, 0x40000, WS_DBG + kid*0x40000)
    a("s_waitcnt lgkmcnt(0)")
    a("v_lshrrev_b32 v250, 6, v0")
    a("v_lshlrev_b32 v250, 6, v250")
    a("s_lshl_b32 s100, s2, 9")
    for i in range(n+1):
        a(f"v_mov_b32 v251, s{80+2*i}")
        a(f"buffer_store_dword v251, v250, s[96:99], s100 offen offset:{4*i}")

WS_T = 0x6000

class VM:
    def __init__(self, a):
        self.a = a
        self.q = []
    def issue(self, tag, n=1):
        self.q += [tag] * n
    def need(self, tag):
        idx = [i for i, t in enumerate(self.q) if t == tag]
        if not idx:
            return None
        return len(self.q) - 1 - idx[-1]
    def wait(self, tag, extra=""):
        n = self.need(tag)
        if n is None:
            if extra: self.a(f"s_waitcnt {extra}")
            return
        assert n <= 63, n
        self.a(f"s_waitcnt vmcnt({n}) {extra}")
        self.q = self.q[len(self.q) - n:]
```

```python
S, D, H, DH, F = 2048, 1024, 32, 32, 3584

KA_X, KA_WQKV, KA_WO, KA_BX, KA_WR, KA_WG, KA_WU, KA_WD, KA_C, KA_WMOD, KA_OUT, KA_DBG, KA_WS = [8*i for i in range(13)]

WS_MOD   = 0x0
WS_ZERO  = 0x8000
WS_STAT  = 0x8000
WS_GU    = 0xE000
WS_Y     = 0x15000
WS_CNT   = 0x16000
WS_ZERO_END = 0x20400
WS_C1    = 0xE000
WS_YR    = 0x10000
WS_C2    = 0x20000
WS_P     = 0x20800
WS_H     = 0x100000
WS_Q     = 0x500000
WS_K     = 0x900000
WS_V     = 0xD00000
WS_O     = 0x1100000
WS_X1    = 0x1500000
WS_SIZE  = 268435456

class Asm:
    def __init__(self):
        self.lines = []
        self.uid = 0
    def __call__(self, s):
        for l in s.split("\n"):
            l = l.strip()
            if l:
                self.lines.append("    " + l)
    def label(self, l):
        self.lines.append(l + ":")
    def comment(self, c):
        self.lines.append("    ; " + c)
    def newlabel(self, base):
        self.uid += 1
        return f"L_{base}_{self.uid}"
    def text(self):
        return "\n".join(self.lines) + "\n"

def kbegin(a, name):
    a.lines.append(f".globl {name}\n.p2align 8\n.type {name},@function\n{name}:")

def kdesc(name, vgpr, sgpr=102, accum=None, force=False):
    import os
    if os.environ.get('STAMPS', '0') in ('1', '2') and not force:
        vgpr = 256
    if accum is None:
        accum = (vgpr + 3) // 4 * 4
    return f""".p2align 6
.amdhsa_kernel {name}
  .amdhsa_next_free_vgpr {vgpr}
  .amdhsa_next_free_sgpr {sgpr}
  .amdhsa_accum_offset {accum}
  .amdhsa_group_segment_fixed_size 0
  .amdhsa_kernarg_size 104
  .amdhsa_user_sgpr_count 2
  .amdhsa_user_sgpr_kernarg_segment_ptr 1
  .amdhsa_system_sgpr_workgroup_id_x 1
.end_amdhsa_kernel
"""

def srd(a, dst, base, nbytes, off=0):
    if off:
        a(f"s_add_u32 s{dst}, s{base}, {hex(off)}")
        a(f"s_addc_u32 s{dst+1}, s{base+1}, 0")
    else:
        a(f"s_mov_b32 s{dst}, s{base}")
        a(f"s_mov_b32 s{dst+1}, s{base+1}")
    a(f"s_mov_b32 s{dst+2}, {hex(nbytes)}")
    a(f"s_mov_b32 s{dst+3}, 0x00020000")

def vr(lo, n):
    return f"v[{lo}:{lo+n-1}]" if n > 1 else f"v{lo}"
def ar(lo, n):
    return f"a[{lo}:{lo+n-1}]" if n > 1 else f"a{lo}"
def sr(lo, n):
    return f"s[{lo}:{lo+n-1}]" if n > 1 else f"s{lo}"

def wave_allreduce(a, v, t, op="add"):
    ins = {"add": "v_add_f32", "max": "v_max_f32"}[op]
    a("s_nop 1")
    a(f"{ins}_dpp v{v}, v{v}, v{v} quad_perm:[1,0,3,2] row_mask:0xf bank_mask:0xf")
    a("s_nop 1")
    a(f"{ins}_dpp v{v}, v{v}, v{v} quad_perm:[2,3,0,1] row_mask:0xf bank_mask:0xf")
    a("s_nop 1")
    a(f"{ins}_dpp v{v}, v{v}, v{v} row_half_mirror row_mask:0xf bank_mask:0xf")
    a("s_nop 1")
    a(f"{ins}_dpp v{v}, v{v}, v{v} row_mirror row_mask:0xf bank_mask:0xf")
    a(f"v_mov_b32 v{t}, v{v}")
    a("s_nop 1")
    a(f"v_permlane16_swap_b32 v{t}, v{v}")
    a("s_nop 0")
    a(f"{ins} v{v}, v{v}, v{t}")
    a(f"v_mov_b32 v{t}, v{v}")
    a("s_nop 1")
    a(f"v_permlane32_swap_b32 v{t}, v{v}")
    a("s_nop 0")
    a(f"{ins} v{v}, v{v}, v{t}")

def wave_allreduce2(a, v1, v2, t1, t2, op="add"):
    ins = {"add": "v_add_f32", "max": "v_max_f32"}[op]
    a("s_nop 1")
    for m in ("quad_perm:[1,0,3,2]", "quad_perm:[2,3,0,1]", "row_half_mirror", "row_mirror"):
        a("s_nop 0")
        a(f"{ins}_dpp v{v1}, v{v1}, v{v1} {m} row_mask:0xf bank_mask:0xf")
        a(f"{ins}_dpp v{v2}, v{v2}, v{v2} {m} row_mask:0xf bank_mask:0xf")
    for p in ("v_permlane16_swap_b32", "v_permlane32_swap_b32"):
        a(f"v_mov_b32 v{t1}, v{v1}")
        a(f"v_mov_b32 v{t2}, v{v2}")
        a("s_nop 1")
        a(f"{p} v{t1}, v{v1}")
        a(f"{p} v{t2}, v{v2}")
        a("s_nop 0")
        a(f"{ins} v{v1}, v{v1}, v{t1}")
        a(f"{ins} v{v2}, v{v2}, v{t2}")

LOG2E = 1.4426950408889634
import struct
def f32hex(x):
    return hex(struct.unpack("<I", struct.pack("<f", x))[0])

import os
STAMPS = os.environ.get("STAMPS", "0") in ("1", "2")
STAMP_INS = "s_memtime" if os.environ.get("STAMPS", "0") == "2" else "s_memrealtime"
WS_DBG = 0x1A00000
def stamp(a, i):
    if STAMPS:
        a(f"{STAMP_INS} s[{80+2*i}:{81+2*i}]")
def stamp_flush(a, n, kid, wsreg=8, tv=250):
    if not STAMPS:
        return
    a("s_mov_b64 exec, -1")
    a(f"{STAMP_INS} s[{80+2*n}:{81+2*n}]")
    srd(a, 96, wsreg, 0x40000, WS_DBG + kid*0x40000)
    a("s_waitcnt lgkmcnt(0)")
    a(f"v_lshrrev_b32 v{tv}, 6, v0")
    a(f"v_lshlrev_b32 v{tv}, 6, v{tv}")
    a("s_lshl_b32 s100, s2, 9")
    for i in range(n+1):
        a(f"v_mov_b32 v{tv+1}, s{80+2*i}")
        a(f"buffer_store_dword v{tv+1}, v{tv}, s[96:99], s100 offen offset:{4*i}")

WS_T = 0x6000

class VM:
    def __init__(self, a):
        self.a = a
        self.q = []
    def issue(self, tag, n=1):
        self.q += [tag] * n
    def need(self, tag):
        idx = [i for i, t in enumerate(self.q) if t == tag]
        if not idx:
            return None
        return len(self.q) - 1 - idx[-1]
    def wait(self, tag, extra=""):
        n = self.need(tag)
        if n is None:
            if extra: self.a(f"s_waitcnt {extra}")
            return
        assert n <= 63, n
        self.a(f"s_waitcnt vmcnt({n}) {extra}")
        self.q = self.q[len(self.q) - n:]

XN_TILED = os.environ.get("XN_TILED", "1") == "1"
```
